```python
import torch

def _softmax(x, axis=-1):
    return torch.softmax(x, dim=axis)
def _gelu(x):
    return torch.nn.functional.gelu(x, approximate="tanh")
def _silu(x):
    return torch.nn.functional.silu(x)
def _sigmoid(x):
    return torch.sigmoid(x)
def _layernorm(x, axis=-1, eps=1e-5):
    m = x.mean(dim=axis, keepdim=True)
    v = x.var(dim=axis, keepdim=True, unbiased=False)
    return (x - m) / torch.sqrt(v + eps)
def _scatter_add(tgt, idx, src, axis=0):
    return tgt.clone().index_add_(axis, idx, src)
def _segment_sum(src, seg, n):
    out = torch.zeros((n,) + src.shape[1:], dtype=src.dtype)
    return out.index_add_(0, seg, src)
def _pad(x, pw):
    flat = tuple(v for pair in reversed(pw) for v in pair)
    return torch.nn.functional.pad(x, flat)

kernel_name = 'concat_heads__softmax_full_mha__mha_block__prompt'

def setup_inputs():

    _w = (lambda a: (lambda t: t.to(torch.bfloat16) if t.is_floating_point() else t)(torch.as_tensor(a)))
    def _A_setup():
        B, S, D = 1, 2048, 448
        return {
            "x": _w((lambda *s: torch.randn(*s, dtype=torch.bfloat16) * 0.2)(B, S, D)),
            "wqkv": _w((lambda *s: torch.randn(*s, dtype=torch.bfloat16) * 0.2)(D, 3 * D)),
            "wo": _w((lambda *s: torch.randn(*s, dtype=torch.bfloat16) * 0.05)(D, D)),
        }
    _A_in = _A_setup()

    def _B_setup():
        B, S, D, H = 1, 2048, 448, 16
        return {
            "x": _w((lambda *s: torch.randn(*s, dtype=torch.bfloat16) * 0.2)(B, S, D)),
            "wqkv": _w((lambda *s: torch.randn(*s, dtype=torch.bfloat16) * 0.2)(D, 3 * D)),
            "wo": _w((lambda *s: torch.randn(*s, dtype=torch.bfloat16) * 0.05)(D, D)),
        }
    _B_in = _B_setup()

    return {
        "A_x": _A_in["x"],
        "A_wqkv": _A_in["wqkv"],
        "A_wo": _A_in["wo"],
        "B_x": _B_in["x"],
        "B_wqkv": _B_in["wqkv"],
        "B_wo": _B_in["wo"],
    }

def reference(A_x, A_wqkv, A_wo, B_x, B_wqkv, B_wo):
    def _A_ref(x, wqkv, wo):
        B, S, D = x.shape
        H = 16; Dh = D // H
        qkv = (lambda x, *d: x.permute(*d))((x @ wqkv).reshape(B, S, 3, H, Dh), 2, 0, 3, 1, 4)
        q, k, v = qkv[0], qkv[1], qkv[2]
        scale = Dh ** -0.5
        scores = torch.einsum("bhqd,bhkd->bhqk", q, k) * scale
        p = _softmax(scores, axis=-1)
        o = torch.einsum("bhqk,bhkd->bhqd", p, v)
        return (lambda x, *d: x.permute(*d))(o, 0, 2, 1, 3).reshape(B, S, D) @ wo

    def _B_ref(x, wqkv, wo):
        B, S, D = x.shape
        H = 16
        Dh = D // H
        qkv = (lambda x, *d: x.permute(*d))((x @ wqkv).reshape(B, S, 3, H, Dh), 2, 0, 3, 1, 4)
        q, k, v = qkv[0], qkv[1], qkv[2]
        scores = torch.einsum("bhqd,bhkd->bhqk", q, k) * (Dh ** -0.5)
        p = _softmax(scores, axis=-1)
        o = torch.einsum("bhqk,bhkd->bhqd", p, v)
        return (lambda x, *d: x.permute(*d))(o, 0, 2, 1, 3).reshape(B, S, D) @ wo

    a = _A_ref(A_x, A_wqkv, A_wo)
    b = _B_ref(B_x, B_wqkv, B_wo)
    return torch.concatenate([a, b], axis=-1)
```

```python
import sys
HDR = """; @launch grid=({grid},1,1) block=({block},1,1) lds={lds}
; UNITS={units}
.amdgcn_target "amdgcn-amd-amdhsa--gfx950"
.text
.globl mb_kernel
.p2align 8
.type mb_kernel,@function
mb_kernel:
    s_load_dwordx2 s[4:5], s[0:1], 0
    s_load_dwordx2 s[6:7], s[0:1], 8
    s_waitcnt lgkmcnt(0)
    s_mov_b32 s8, s4
    s_mov_b32 s9, s5
    s_mov_b32 s10, 0x2000000
    s_mov_b32 s11, 0x20000
    s_mov_b32 s12, s6
    s_mov_b32 s13, s7
    s_mov_b32 s14, 0x1000000
    s_mov_b32 s15, 0x20000
    v_lshlrev_b32 v1, 4, v0
"""
FTR = """
    s_endpgm
.section .rodata,"a"
.p2align 6
.amdhsa_kernel mb_kernel
  .amdhsa_next_free_vgpr {nv}
  .amdhsa_next_free_sgpr 64
  .amdhsa_accum_offset {acc}
  .amdhsa_group_segment_fixed_size 0
  .amdhsa_kernarg_size 32
  .amdhsa_user_sgpr_count 2
  .amdhsa_user_sgpr_kernarg_segment_ptr 1
  .amdhsa_system_sgpr_workgroup_id_x 1
.end_amdhsa_kernel
"""
def gen(name, body, wps, iters=200, units_per_iter=1, nv=128, grid=256, init_extra=""):
    block = 256 * wps
    s = HDR.format(grid=grid, block=block, lds=0, units=iters * units_per_iter)
    for r in range(4, 28, 4):
        s += f"    buffer_load_dwordx4 v[{r}:{r+3}], v1, s[8:11], 0 offen offset:{(r)*64}\n"
    for r in range(28, nv):
        s += f"    v_mov_b32 v{r}, 0\n"
    s += init_extra
    s += "    s_waitcnt vmcnt(0)\n    s_barrier\n"
    s += f"    s_mov_b32 s20, {iters}\n"
    s += "    s_memtime s[16:17]\n    s_memrealtime s[22:23]\n    s_waitcnt lgkmcnt(0)\n"
    s += ".p2align 6\nL_loop:\n"
    s += body
    s += "    s_sub_u32 s20, s20, 1\n    s_cmp_lg_u32 s20, 0\n    s_cbranch_scc1 L_loop\n"
    s += "    s_memtime s[18:19]\n    s_memrealtime s[24:25]\n    s_waitcnt lgkmcnt(0)\n"
    s += "    s_sub_u32 s18, s18, s16\n    s_sub_u32 s24, s24, s22\n"
    s += f"""    v_lshrrev_b32 v2, 6, v0
    s_mul_i32 s3, s2, {block//64}
    v_add_u32 v2, s3, v2
    v_lshlrev_b32 v2, 4, v2
    v_mov_b32 v4, s18
    v_mov_b32 v5, s24
    v_mov_b32 v6, 0
    v_mov_b32 v7, 0
    s_nop 4
    buffer_store_dwordx4 v[4:7], v2, s[12:15], 0 offen
    s_waitcnt vmcnt(0)
"""
    s += FTR.format(nv=nv, acc=(nv + 3) // 4 * 4)
    open(name, "w").write(s)

def exps(n, src=32, dst=64):
    return [f"    v_exp_f32 v{dst+i%16}, v{src+i%16}\n" for i in range(n)]
def fmas(n, src=32, dst=64):
    return [f"    v_fma_f32 v{dst+i%16}, v{src+i%16}, v{src+i%16}, v{src+(i+1)%16}\n" for i in range(n)]
def cvts(n, src=64, dst=96):
    return [f"    v_cvt_pk_bf16_f32 v{dst+i%8}, v{src+2*(i%8)}, v{src+2*(i%8)+1}\n" for i in range(n)]

def main():
    names = []
    for wps in (1, 2, 4):
        gen(f"exp_w{wps}.s", "".join(exps(64)), wps, units_per_iter=64); names.append(f"exp_w{wps}.s")
        gen(f"fma_w{wps}.s", "".join(fmas(64)), wps, units_per_iter=64); names.append(f"fma_w{wps}.s")
        gen(f"cvt_w{wps}.s", "".join(cvts(64)), wps, units_per_iter=64); names.append(f"cvt_w{wps}.s")
        b = ""
        e = exps(32); c = cvts(16, src=100, dst=116)
        for i in range(16):
            b += e[2*i] + e[2*i+1] + c[i]
        gen(f"expcvt_w{wps}.s", b, wps, units_per_iter=2); names.append(f"expcvt_w{wps}.s")
        b = ""
        for i in range(8):
            d = 32 + 16 * (i % 4)
            b += f"    v_mfma_f32_32x32x16_bf16 v[{d}:{d+15}], v[4:7], v[8:11], v[{d}:{d+15}]\n"
        gen(f"mfma_w{wps}.s", b, wps, units_per_iter=8); names.append(f"mfma_w{wps}.s")
        b = ""
        for t in range(2):
            sw = 32 + 16 * t
            sr = 48 - 16 * t
            e = exps(16, src=sr, dst=64); c = cvts(8, src=64, dst=80 + 8*t)
            pr = 88 - 8*t
            m = [f"    v_mfma_f32_32x32x16_bf16 v[{sw}:{sw+15}], v[4:7], v[8:11], 0\n",
                 f"    v_mfma_f32_32x32x16_bf16 v[104:119], v[12:15], v[{pr}:{pr+3}], v[104:119]\n",
                 f"    v_mfma_f32_32x32x16_bf16 v[{sw}:{sw+15}], v[16:19], v[20:23], v[{sw}:{sw+15}]\n",
                 f"    v_mfma_f32_32x32x16_bf16 v[104:119], v[24:27], v[{pr+4}:{pr+7}], v[104:119]\n"]
            for q in range(4):
                b += m[q]
                b += e[4*q] + e[4*q+1] + e[4*q+2] + e[4*q+3]
                if q > 0:
                    b += c[2*q-2] + c[2*q-1]
            b += c[6] + c[7]
        gen(f"mix_w{wps}.s", b, wps, units_per_iter=2); names.append(f"mix_w{wps}.s")
    print(" ".join(names))

if __name__ == "__main__":
    main()
```

```python
from gen1 import HDR, FTR
def gen(name, pat, dma=False, nwaves=4):
    block = 64 * nwaves
    s = HDR.format(grid=256, block=block, lds=65536 if dma else 0, units=56)
    rows_per_wave = 256 // nwaves
    s += f"""    s_and_b32 s3, s2, 15
    s_mul_i32 s3, s3, {256*896}
    v_lshrrev_b32 v2, 6, v0      ; wave
    v_and_b32 v3, 63, v0         ; lane
    v_mul_u32_u24 v2, {rows_per_wave*896}, v2
    v_add_u32 v2, s3, v2
"""
    if pat == "f32":
        s += """    v_and_b32 v4, 31, v3
    v_lshrrev_b32 v5, 5, v3
    v_mul_u32_u24 v4, 896, v4
    v_lshlrev_b32 v5, 4, v5
    v_add3_u32 v2, v2, v4, v5
    v_add_u32 v6, 28672, v2
"""
        offs = [(0 if t == 0 else 1, k * 32) for kk in range(7) for t in range(2) for k in range(4*kk, 4*kk+4)]
    elif pat == "f16":
        s += """    v_and_b32 v4, 15, v3
    v_lshrrev_b32 v5, 4, v3
    v_mul_u32_u24 v4, 896, v4
    v_lshlrev_b32 v5, 4, v5
    v_add3_u32 v2, v2, v4, v5
    v_add_u32 v6, 14336, v2
    v_add_u32 v7, 14336, v6
    v_add_u32 v8, 14336, v7
"""
        offs = [(t, k * 64) for kk in range(7) for t in range(4) for k in range(2*kk, 2*kk+2)]
    elif pat == "lin":
        s += """    v_lshrrev_b32 v4, 3, v3
    v_and_b32 v5, 7, v3
    v_mul_u32_u24 v4, 896, v4
    v_lshlrev_b32 v5, 4, v5
    v_add3_u32 v2, v2, v4, v5
"""
        for t in range(1, 8):
            s += f"    v_add_u32 v{5+t}, {7168*t}, v2\n"
        offs = [(t, k * 128) for k in range(7) for t in range(8)]
    elif pat == "flat":
        s += """    v_lshlrev_b32 v5, 4, v3
    v_add_u32 v2, v2, v5
"""
        for t in range(1, 14):
            s += f"    v_add_u32 v{5+t}, {4096*t}, v2\n"
        offs = [(t, k * 1024) for t in range(14) for k in range(4)]
    reg = lambda t: 2 if t == 0 else 5 + t
    nld = len(offs) * rows_per_wave // 64
    offs = offs[:nld] if rows_per_wave < 64 else offs
    s += "    s_mov_b32 s20, 4\n    v_lshrrev_b32 v30, 6, v0\n    v_lshlrev_b32 v30, 14, v30\n    s_nop 1\n    v_readfirstlane_b32 s26, v30\nL_loop:\n    s_barrier\n"
    s += "    s_memtime s[16:17]\n    s_memrealtime s[22:23]\n    s_waitcnt lgkmcnt(0)\n"
    for i, (t, o) in enumerate(offs):
        if dma:
            s += f"    s_add_u32 m0, s26, {(i % 16) * 1024 - o}\n    s_nop 0\n" if False else f"    s_add_u32 s27, s26, {(i % 12) * 1024}\n    s_mov_b32 m0, s27\n    s_mov_b32 s28, {o}\n"
            s += f"    buffer_load_dwordx4 v{reg(t)}, s[8:11], s28 offen lds\n"
        else:
            s += f"    buffer_load_dwordx4 v[{32+4*i}:{35+4*i}], v{reg(t)}, s[8:11], 0 offen offset:{o}\n"
    s += "    s_memtime s[30:31]\n"
    s += "    s_waitcnt vmcnt(0)\n"
    s += "    s_memtime s[18:19]\n    s_memrealtime s[24:25]\n    s_waitcnt lgkmcnt(0)\n"
    s += "    s_sub_u32 s20, s20, 1\n    s_cmp_lg_u32 s20, 0\n    s_cbranch_scc1 L_loop\n"
    s += "    s_sub_u32 s18, s18, s16\n    s_sub_u32 s24, s24, s22\n    s_sub_u32 s30, s30, s16\n"
    s += f"""    v_lshrrev_b32 v2, 6, v0
    s_mul_i32 s3, s2, {block//64}
    v_add_u32 v2, s3, v2
    v_lshlrev_b32 v2, 4, v2
    v_mov_b32 v4, s18
    v_mov_b32 v5, s24
    v_mov_b32 v6, s30
    v_mov_b32 v7, 0
    s_nop 4
    buffer_store_dwordx4 v[4:7], v2, s[12:15], 0 offen
    s_waitcnt vmcnt(0)
"""
    s += FTR.format(nv=256, acc=256)
    open(name, "w").write(s)
names = []
for pat in ("f32", "f16", "lin", "flat"):
    gen(f"ld_{pat}.s", pat); names.append(f"ld_{pat}.s")
for pat in ("f32", "lin", "flat"):
    gen(f"ld_{pat}_dma.s", pat, dma=True); names.append(f"ld_{pat}_dma.s")
print(" ".join(names))
```
